```python
import torch

def _softmax(x, axis=-1):
    return torch.softmax(x, dim=axis)

def _gelu(x):
    return torch.nn.functional.gelu(x, approximate='tanh')

def _silu(x):
    return torch.nn.functional.silu(x)

def _sigmoid(x):
    return torch.sigmoid(x)

def _layernorm(x, axis=-1, eps=1e-05):
    m = x.mean(dim=axis, keepdim=True)
    v = x.var(dim=axis, keepdim=True, unbiased=False)
    return (x - m) / torch.sqrt(v + eps)

def _scatter_add(tgt, idx, src, axis=0):
    return tgt.clone().index_add_(axis, idx, src)

def _segment_sum(src, seg, n):
    out = torch.zeros((n,) + src.shape[1:], dtype=src.dtype)
    return out.index_add_(0, seg, src)

def _pad(x, pw):
    flat = tuple((v for pair in reversed(pw) for v in pair))
    return torch.nn.functional.pad(x, flat)
kernel_name = 'adaLN_cond__compressed_kv_cla__dense_activation_squared_relu__prompt'

def setup_inputs():

    _w = lambda a: (lambda t: t.to(torch.bfloat16) if t.is_floating_point() else t)(torch.as_tensor(a))

    def _A_setup():
        B, H, Sq, Sk, D, M = (1, 32, 2048, 2048, 128, 640)
        Dc = 4 * D
        return {'x': _w((lambda *s: torch.randn(*s, dtype=torch.bfloat16) * 0.05)(B, Sq, M)), 'c_kv': _w((lambda *s: torch.randn(*s, dtype=torch.bfloat16) * 1.6)(B, Sk, Dc)), 'w_q': _w((lambda *s: torch.randn(*s, dtype=torch.bfloat16) * 0.8)(M, H, D) * M ** (-0.5)), 'w_uk': _w((lambda *s: torch.randn(*s, dtype=torch.bfloat16) * 0.8)(Dc, H, D) * Dc ** (-0.5)), 'w_uv': _w((lambda *s: torch.randn(*s, dtype=torch.bfloat16) * 1.6)(Dc, H, D) * Dc ** (-0.5)), 'w_o': _w((lambda *s: torch.randn(*s, dtype=torch.bfloat16) * 1.6)(H, D, M) * (H * D) ** (-0.5))}
    _A_in = _A_setup()

    def _B_setup():
        B, S, D, F = (1, 2048, 640, 1728)
        return {'x': _w((lambda *s: torch.randn(*s, dtype=torch.bfloat16) * 0.05)(B, S, D)), 'w1': _w((lambda *s: torch.randn(*s, dtype=torch.bfloat16) * 0.05)(D, F)), 'b1': _w((lambda *s: torch.randn(*s, dtype=torch.bfloat16) * 0.4)(F)), 'w2': _w((lambda *s: torch.randn(*s, dtype=torch.bfloat16) * 0.05)(F, D)), 'b2': _w((lambda *s: torch.randn(*s, dtype=torch.bfloat16) * 3.2)(D))}
    _B_in = _B_setup()
    return {'A_x': _A_in['x'], 'A_c_kv': _A_in['c_kv'], 'A_w_q': _A_in['w_q'], 'A_w_uk': _A_in['w_uk'], 'A_w_uv': _A_in['w_uv'], 'A_w_o': _A_in['w_o'], 'B_x': _B_in['x'], 'B_w1': _B_in['w1'], 'B_b1': _B_in['b1'], 'B_w2': _B_in['w2'], 'B_b2': _B_in['b2'], 'c': _w((lambda *s: torch.randn(*s, dtype=torch.bfloat16) * 0.1)(1, 640) * 8.0), 'w_mod': _w((lambda *s: torch.randn(*s, dtype=torch.bfloat16) * 0.1)(640, 6 * 640) * 640 ** (-0.5) * 8.0)}

def reference(A_x, A_c_kv, A_w_q, A_w_uk, A_w_uv, A_w_o, B_x, B_w1, B_b1, B_w2, B_b2, c, w_mod):

    def _A_ref(x, c_kv, w_q, w_uk, w_uv, w_o):
        B, Sq, M = (x.shape[0], x.shape[1], x.shape[2])
        Sk = c_kv.shape[1]
        H, D = (w_q.shape[1], w_q.shape[2])
        q = torch.einsum('bqm,mhd->bhqd', x, w_q)
        k = torch.einsum('bkc,chd->bhkd', c_kv, w_uk)
        v = torch.einsum('bkc,chd->bhkd', c_kv, w_uv)
        scores = torch.einsum('bhqd,bhkd->bhqk', q, k) * D ** (-0.5)
        off = Sk - Sq
        qi = torch.arange(Sq)[:, None]
        kj = torch.arange(Sk)[None, :]
        cmask = kj <= qi + off
        scores = torch.where(cmask[None, None], scores, -1000000000.0)
        p = _softmax(scores, axis=-1)
        ctx = torch.einsum('bhqk,bhkd->bhqd', p, v)
        return torch.einsum('bhqd,hdm->bqm', ctx, w_o)

    def _B_ref(x, w1, b1, w2, b2):
        h = torch.einsum('bsd,df->bsf', x, w1) + b1
        zero = torch.zeros_like(h)
        r = torch.where(h > zero, h, zero)
        h = r * r
        out = torch.einsum('bsf,fd->bsd', h, w2) + b2
        return out
    x = A_x
    mod = (_silu(c) @ w_mod).reshape(c.shape[0], 6, 1, -1)
    sa, ca, ga, sb, cb, gb = (mod[:, 0].clone(), mod[:, 1].clone(), mod[:, 2].clone(), mod[:, 3].clone(), mod[:, 4].clone(), mod[:, 5].clone())
    h = _layernorm(x, axis=-1) * (1 + ca) + sa
    x = x + ga * _A_ref(h, A_c_kv, A_w_q, A_w_uk, A_w_uv, A_w_o)
    h = _layernorm(x, axis=-1) * (1 + cb) + sb
    x = x + gb * _B_ref(h, B_w1, B_b1, B_w2, B_b2)
    return x
```

```python
import re

TRANS = ("v_exp_f32", "v_log_f32", "v_rcp_f32", "v_rsq_f32", "v_sqrt_f32", "v_sin_f32", "v_cos_f32")
_reg = re.compile(r"^-?(?:abs\()?\|?([vas])(?:(\d+)|\[(\d+):(\d+)\])\|?\)?$")

def regs(op):
    op = op.strip()
    if op in ("vcc",): return [("s", "vcc")]
    if op in ("exec",): return [("s", "exec")]
    if op == "m0": return [("s", "m0")]
    m = _reg.match(op)
    if not m: return []
    t = m.group(1)
    if m.group(2) is not None: return [(t, int(m.group(2)))]
    return [(t, i) for i in range(int(m.group(3)), int(m.group(4)) + 1)]

class Ins:
    __slots__ = ("text", "op", "kind", "defs", "uses", "srcc", "ab", "tag", "need", "wait_after", "wait_before", "nops", "label", "wide")
    def __init__(self, text, tag=None, need=None):
        self.text = text.strip(); self.tag = tag; self.need = need or []
        self.wait_after = {}; self.wait_before = {}; self.nops = 0
        self.defs = []; self.uses = []; self.srcc = []; self.ab = []; self.label = False; self.wide = False
        t = self.text.split(";")[0].strip()
        if t == "" or t.endswith(":") or t.startswith("."):
            self.kind = "none"; self.op = ""; self.label = True; return
        parts = t.split(None, 1); op = parts[0]; self.op = op
        rest = parts[1] if len(parts) > 1 else ""
        ops = [o.strip() for o in rest.split(",")] if rest else []
        mods = []
        if ops:
            last = ops[-1].split()
            ops[-1] = last[0] if last else ""
            mods = last[1:]
        R = [regs(o) for o in ops]
        flat = lambda L: [x for r in L for x in r]
        if op.startswith("v_mfma"):
            self.kind = "mfma"; self.defs = R[0]; self.ab = R[1] + R[2]; self.srcc = R[3]; self.uses = self.ab + self.srcc
        elif op.startswith("ds_"):
            self.kind = "lds"
            if op.startswith(("ds_read", "ds_swizzle", "ds_bpermute", "ds_permute")): self.defs = R[0]; self.uses = flat(R[1:])
            else: self.uses = flat(R)
        elif op.startswith(("buffer_", "global_")):
            self.kind = "vmem"
            if op in ("buffer_wbl2", "buffer_inv"): pass
            elif "load" in op and "lds" not in mods and "_lds_" not in op: self.defs = R[0]; self.uses = flat(R[1:])
            elif "load" in op: self.uses = flat(R) + [("s", "m0")]
            elif "atomic" in op and "sc0" in mods: self.defs = R[0]; self.uses = flat(R)
            else:
                self.uses = flat(R)
                self.wide = op.endswith(("x3", "x4"))
        elif op.startswith("v_"):
            self.kind = "trans" if op.startswith(TRANS) else "valu"
            self.defs = list(R[0]); self.uses = flat(R[1:])
            if "swap" in op: self.defs = R[0] + R[1]; self.uses = R[0] + R[1]
            if op.startswith(("v_fmac", "v_writelane")) or "dpp" in op: self.uses = self.uses + R[0]
            if op.startswith(("v_add_co", "v_sub_co", "v_addc_co")): self.defs = R[0] + R[1]; self.uses = flat(R[2:])
            if op == "v_nop": self.defs = []; self.uses = []
        elif op.startswith("s_"):
            self.kind = "salu"
            if op.startswith(("s_load", "s_memtime", "s_memrealtime", "s_buffer_load")): self.kind = "smem"
            if op.startswith(("s_cmp", "s_bitcmp", "s_cbranch", "s_branch", "s_waitcnt", "s_barrier", "s_nop", "s_endpgm", "s_sleep", "s_setprio", "s_setpc")):
                self.uses = flat(R)
            else:
                self.defs = list(R[0]) if R else []; self.uses = flat(R[1:])
                if "saveexec" in op: self.defs += [("s", "exec")]; self.uses += [("s", "exec")]
        elif op == "NEED":
            self.kind = "none"; self.label = True
        else:
            raise ValueError("unknown op: " + text)
    def states(self):
        if self.kind == "none": return 0
        if self.op == "s_nop": return int(self.text.split()[1]) + 1
        return 1

def _wtxt(w):
    p = []
    if "vm" in w: p.append("vmcnt(%d)" % w["vm"])
    if "lgkm" in w: p.append("lgkmcnt(%d)" % w["lgkm"])
    return "s_waitcnt " + " ".join(p)

class Block:
    def __init__(self, name): self.name = name; self.ins = []
    def add(self, text, tag=None, need=None):
        lines = [l for l in text.split("\n") if l.strip()]
        out = None
        for k, l in enumerate(lines):
            out = Ins(l, tag if k == len(lines) - 1 else None, need if k == 0 else None)
            self.ins.append(out)
        return out
    __call__ = add
    def emit(self):
        L = []
        for i in self.ins:
            if i.wait_before: L.append(_wtxt(i.wait_before))
            n = i.nops
            while n > 0:
                k = min(n, 16); L.append("s_nop %d" % (k - 1)); n -= k
            if i.op != "NEED": L.append(i.text)
            if i.wait_after: L.append(_wtxt(i.wait_after))
        return "\n".join(L)

MAXC = {"vm": 63, "lgkm": 15}

def _apply(q, n):
    while len(q) > n: q.pop(0)

def insert_waits(path, hoist=True):
    changed = False
    q = {"vm": [], "lgkm": []}
    lastm = None
    issued = {"vm": 0, "lgkm": 0}
    for b in path:
        lastm = None
        for I in b.ins:
            for c, n in I.wait_before.items(): _apply(q[c], n)
            if I.kind != "none" or I.need:
                touched = set(I.uses) | set(I.defs)
                for c in ("vm", "lgkm"):
                    hit = None
                    for (sq, P) in q[c]:
                        dep = (P.tag is not None and P.tag in I.need) or (("all_" + c) in I.need)
                        if not dep and P.defs and touched & set(P.defs):
                            if not (set(I.uses) & set(P.defs)) and I.kind == P.kind and c == ("vm" if I.kind == "vmem" else "lgkm") and P.kind != "smem":
                                dep = False
                            else: dep = True
                        if dep: hit = (sq, P)
                    if hit:
                        sq, P = hit
                        smem = any(x[1].kind == "smem" for x in q[c])
                        if hoist and lastm is not None and lastm[1][c] > sq and not smem:
                            n = min(lastm[1][c] - sq - 1, MAXC[c]); tgt = lastm[0].wait_after
                        else:
                            n = 0 if smem else min(issued[c] - sq - 1, MAXC[c]); tgt = I.wait_before
                        if c not in tgt or tgt[c] > n: tgt[c] = n; changed = True
                        if smem: q[c].clear()
                        while q[c] and q[c][0][0] <= sq: q[c].pop(0)
            if I.op == "s_waitcnt":
                m = re.search(r"vmcnt\((\d+)\)", I.text)
                if m: _apply(q["vm"], int(m.group(1)))
                m = re.search(r"lgkmcnt\((\d+)\)", I.text)
                if m: _apply(q["lgkm"], int(m.group(1)))
            c = {"vmem": "vm", "lds": "lgkm", "smem": "lgkm"}.get(I.kind)
            if c:
                q[c].append((issued[c], I)); issued[c] += 1
                if c == "vm" and len(q[c]) > 63: raise RuntimeError("more than 63 vm ops outstanding at " + I.text + " in " + b.name)
            if I.kind == "mfma": lastm = (I, dict(issued))
            if I.label and I.text.endswith(":"): lastm = None
            for c, n in I.wait_after.items(): _apply(q[c], n)
    return changed

def _passes(I):
    return 8 if "32x32" in I.op else 4
_D_VALU = {4: 8, 8: 12}; _D_AB = {4: 8, 8: 12}; _D_COV = {4: 6, 8: 10}; _C_WAR = {4: 3, 8: 7}

def pad_hazards(path):
    changed = False
    hist = []
    pos = 0
    for b in path:
        for I in b.ins:
            if I.wait_before: pos += 1
            if I.kind == "none":
                if I.wait_after: pos += 1
                continue
            need = 0
            U = set(I.uses); D = set(I.defs)
            for (p, P) in hist:
                dist = pos - p - 1 + 0
                req = 0
                PD = set(P.defs)
                v = P.kind in ("valu", "trans")
                if P.kind == "mfma":
                    n = _passes(P)
                    if I.kind == "mfma":
                        if PD & set(I.ab): req = max(req, _D_AB[n])
                        if PD & set(I.srcc) and not (I.srcc == P.defs and _passes(I) == n): req = max(req, _D_COV[n])
                        if PD & D and not (PD & set(I.srcc)): req = max(req, _D_COV[n])
                    elif I.kind in ("valu", "trans"):
                        if PD & (U | D): req = max(req, _D_VALU[n])
                        if set(P.srcc) & D: req = max(req, _C_WAR[n])
                    elif I.kind in ("vmem", "lds"):
                        if PD & (U | D): req = max(req, _D_VALU[n])
                if v:
                    vd = {r for r in PD if r[0] in "va"}; sd = {r for r in PD if r[0] == "s"}
                    if I.kind == "mfma" and vd & U: req = max(req, 2)
                    if P.kind == "trans" and I.kind in ("valu", "trans", "vmem", "lds") and vd & U: req = max(req, 1)
                    if ("dpp" in I.op or "permlane" in I.op) and vd & U: req = max(req, 2)
                    if I.op.startswith(("v_readfirstlane", "v_readlane")) and vd & U: req = max(req, 1)
                    if I.kind == "vmem" and sd & U: req = max(req, 5)
                    if I.kind in ("valu", "trans") and sd & U: req = max(req, 2)
                    if I.kind in ("salu", "smem") and sd & U: req = max(req, 2)
                    if I.op.startswith("s_cbranch_vcc") and ("s", "vcc") in sd: req = max(req, 2)
                if P.kind == "salu" and ("s", "m0") in PD and ("s", "m0") in U and I.kind == "vmem": req = max(req, 1)
                if P.kind == "salu" and ("s", "exec") in PD and ("dpp" in I.op or "permlane" in I.op): req = max(req, 1)
                if P.kind == "vmem" and P.wide and {r for r in P.uses if r[0] in "va"} & D and I.kind in ("valu", "trans", "mfma"): req = max(req, 2)
                if req > dist: need = max(need, req - dist)
            if need > I.nops: I.nops = need; changed = True
            pos += I.nops
            hist.append((pos, I)); pos += I.states()
            hist[-1] = (pos - 1, I)
            if I.wait_after: pos += 1
            hist = [h for h in hist if pos - h[0] < 24]
    return changed

def finalize(paths, hoist=True):
    for _ in range(20):
        ch = False
        for p in paths: ch |= insert_waits(p, hoist)
        if not ch: break
    else: raise RuntimeError("waits did not converge")
    for _ in range(20):
        ch = False
        for p in paths: ch |= pad_hazards(p)
        if not ch: break
    else: raise RuntimeError("hazards did not converge")

def estimate(blocks, verbose=False):
    t = 0; mf_free = 0; prev = None; shadow = False; nm = 0; over = []
    for b in blocks:
        for line in b.emit().split("\n"):
            I = Ins(line)
            if I.kind == "none": continue
            if I.kind == "mfma":
                if shadow: t += 4
                if t > mf_free and nm: over.append((nm, t - mf_free))
                t = max(t, mf_free); mf_free = t + 4 * _passes(I); t += 4; shadow = True; nm += 1; prev = "mfma"; continue
            if I.kind in ("salu", "smem"):
                t += 4 * I.states(); shadow = False
                continue
            if shadow: t += 4; shadow = False
            if I.kind == "valu": t += 4
            elif I.kind == "trans": t += 8
            elif I.kind == "lds": t += 4 + (8 if prev in ("valu", "trans") else 0)
            elif I.kind == "vmem": t += 8 + (8 if prev in ("valu", "trans") else 0)
            prev = I.kind
    t = max(t, mf_free)
    if verbose: print("  mfma", nm, "cycles", t, "overfull gaps", len(over), "lost", sum(o[1] for o in over), over[:40])
    return t

class Gaps:
    def __init__(self, mf):
        self.mf = list(mf); n = len(mf)
        self.s = [[] for _ in range(n)]; self.m = [[] for _ in range(n)]; self.v = [[] for _ in range(n)]
    def put(self, g, text, tag=None, need=None):
        k = Ins(text.split("\n")[0]).kind
        L = self.s if k in ("salu", "smem", "none") else self.m if k in ("lds", "vmem") else self.v
        L[g].append((text, tag, need))
    def cost(self, g):
        c = 4 * max(0, len([x for x in self.s[g] if not x[0].startswith("NEED")]) - 1)
        for x in self.m[g]: c += 4 if x[0].startswith("ds_") else 8
        for x in self.v[g]: c += 8 if x[0].startswith(TRANS) else 4
        return c
    def place(self, lo, hi, text, budget, tag=None, need=None):
        k = Ins(text).kind
        w = {"lds": 4, "vmem": 8, "valu": 4, "trans": 8}.get(k, 0)
        best = None
        for g in range(lo, hi + 1):
            if w == 0:
                if not self.s[g]: best = g; break
            elif self.cost(g) + w <= budget: best = g; break
        if best is None: best = min(range(lo, hi + 1), key=self.cost)
        self.put(best, text, tag, need); return best
    def seq(self, L, lo, hi, budget, first_need=None, step=0):
        g = lo; pc = -1
        for k, x in enumerate(L):
            txt, tag, need = (x + (None,))[:3] if isinstance(x, tuple) else (x, None, None)
            kind = Ins(txt).kind
            cat = 0 if kind in ("salu", "smem", "none") else 1 if kind in ("lds", "vmem") else 2
            if cat < pc: g += 1
            if k == 0 and first_need: need = (need or []) + first_need
            if g > hi: raise RuntimeError("seq overflow: " + txt)
            g = self.place(g, min(hi, g + 5), txt, budget, tag, need)
            pc = cat
            if cat == 1: g += step
            if "m0," in txt and cat == 0: pass
        return g
    def into(self, blk):
        for g, m in enumerate(self.mf):
            blk.add(m)
            for (t, tag, need) in self.s[g] + self.m[g] + self.v[g]: blk.add(t, tag, need)
```

```python
from asmlib import *
import math
NAME = "adaLN_cond__compressed_kv_cla__dense_activation_squared_relu__prompt"
WS_MOD  = 0
WS_UV   = 0x4000
WS_STAT = 0x10000
WS_H    = 0x100000
WS_A2   = 0x400000
WS_X1   = 0x700000
WS_WO   = 0xD00000
WS_W1   = 0x1300000
WS_W2   = 0x1600000
WS_H1   = 0x1900000
WS_CTX  = 0x2100000
WS_KV   = 0x3200000
HS      = 66 * 16384
WS_SIZE = 0x10000000
QS = math.log2(math.e) / math.sqrt(128.0)
import struct
def fbits(x): return "0x%08x" % struct.unpack("<I", struct.pack("<f", x))[0]
P = {n: 16 + 2 * i for i, n in enumerate(["x", "ckv", "wq", "wuk", "wuv", "wo", "bx", "w1", "b1", "w2", "b2", "c", "wmod", "out", "dbg", "ws"])}
def load_ptrs(b):
    b("s_load_dwordx16 s[16:31], s[0:1], 0")
    b("s_load_dwordx16 s[32:47], s[0:1], 64")
def srd(b, d, ptr, nbytes):
    b(f"s_mov_b32 s{d}, s{P[ptr]}\ns_mov_b32 s{d+1}, s{P[ptr]+1}\ns_mov_b32 s{d+2}, {nbytes}\ns_mov_b32 s{d+3}, 0x20000")
def vr(a, n=4): return f"v[{a}:{a+n-1}]"
def ar(a, n=4): return f"a[{a}:{a+n-1}]"
def sr(a, n=4): return f"s[{a}:{a+n-1}]"
def mfma(d, a, b, c): return f"v_mfma_f32_16x16x32_bf16 {d}, {a}, {b}, {c}"
def kd(name, vgpr=512, acc=256, sgpr=102):
    return f""".p2align 6
.amdhsa_kernel {name}
  .amdhsa_next_free_vgpr {vgpr}
  .amdhsa_next_free_sgpr {sgpr}
  .amdhsa_accum_offset {acc}
  .amdhsa_group_segment_fixed_size 0
  .amdhsa_kernarg_size 128
  .amdhsa_user_sgpr_count 2
  .amdhsa_user_sgpr_kernarg_segment_ptr 1
  .amdhsa_system_sgpr_workgroup_id_x 1
  .amdhsa_float_denorm_mode_32 3
.end_amdhsa_kernel
"""
def khead(name):
    return f".globl {name}\n.p2align 8\n.type {name},@function\n{name}:\n"
def divmagic(d): return -(-(1 << 32) // d)

import os
STAMP = os.environ.get("STAMP", "0") == "1"
WS_STAMP = 0xF000000
class Stamper:
    def __init__(self, kidx, vreg, spair): self.k = kidx; self.v = vreg; self.s = spair; self.n = 0
    def lines(self):
        if not STAMP: return []
        L = []
        if self.n: L.append(f"v_writelane_b32 v{self.v}, s{self.s + 2 * ((self.n - 1) % 2)}, {self.n - 1}")
        L.append(f"s_memrealtime s[{self.s + 2 * (self.n % 2)}:{self.s + 2 * (self.n % 2) + 1}]")
        self.n += 1
        return L
    def at(self, b):
        for l in self.lines(): b(l)
    def fin(self, b, S_WS, sW, vt, st):
        if not STAMP: return
        b("s_waitcnt vmcnt(0)")
        self.at(b); self.at(b)
        b(f"s_lshl_b32 s{st}, s2, 2\ns_add_u32 s{st}, s{st}, s{sW}\ns_lshl_b32 s{st}, s{st}, 8\ns_add_u32 s{st}, s{st}, {WS_STAMP + self.k * 262144}")
        b(f"v_and_b32 v{vt}, 63, v0\nv_lshlrev_b32 v{vt}, 2, v{vt}")
        b(f"buffer_store_dword v{self.v}, v{vt}, {sr(S_WS)}, s{st} offen")
```

```python
import sys, importlib
from common import *
def build(mods, out):
    ref = open(f"cdna_kernels/{NAME}.s.ref").read().split("\n")
    head = [l for l in ref if l.startswith(";") and "@launch" not in l and not l.startswith("; Override") and not l.startswith("; grid=")]
    head = head[:17]
    parts = [importlib.import_module(m).gen() for m in mods]
    txt = "\n".join(head) + "\n" + "\n".join(p[2] for p in parts) + "\n"
    txt += '.amdgcn_target "amdgcn-amd-amdhsa--gfx950"\n.text\n'
    txt += "".join(p[0] for p in parts)
    txt += '.section .rodata,"a"\n' + "".join(p[1] for p in parts)
    open(out, "w").write(txt)
if __name__ == "__main__":
    build(sys.argv[2:], sys.argv[1])
```

```python
import re

TRANS = ("v_exp_f32", "v_log_f32", "v_rcp_f32", "v_rsq_f32", "v_sqrt_f32", "v_sin_f32", "v_cos_f32")
_reg = re.compile(r"^-?(?:abs\()?\|?([vas])(?:(\d+)|\[(\d+):(\d+)\])\|?\)?$")

def regs(op):
    op = op.strip()
    if op in ("vcc",): return [("s", "vcc")]
    if op in ("exec",): return [("s", "exec")]
    if op == "m0": return [("s", "m0")]
    m = _reg.match(op)
    if not m: return []
    t = m.group(1)
    if m.group(2) is not None: return [(t, int(m.group(2)))]
    return [(t, i) for i in range(int(m.group(3)), int(m.group(4)) + 1)]

class Ins:
    __slots__ = ("text", "op", "kind", "defs", "uses", "srcc", "ab", "tag", "need", "wait_after", "wait_before", "nops", "label", "wide", "chain")
    def __init__(self, text, tag=None, need=None):
        self.text = text.strip(); self.tag = tag; self.need = need or []
        self.wait_after = {}; self.wait_before = {}; self.nops = 0
        self.defs = []; self.uses = []; self.srcc = []; self.ab = []; self.label = False; self.wide = False; self.chain = None
        t = self.text.split(";")[0].strip()
        if t == "" or t.endswith(":") or t.startswith("."):
            self.kind = "none"; self.op = ""; self.label = True; return
        parts = t.split(None, 1); op = parts[0]; self.op = op
        rest = parts[1] if len(parts) > 1 else ""
        ops = [o.strip() for o in rest.split(",")] if rest else []
        mods = []
        if ops:
            last = ops[-1].split()
            ops[-1] = last[0] if last else ""
            mods = last[1:]
        R = [regs(o) for o in ops]
        flat = lambda L: [x for r in L for x in r]
        if op.startswith("v_mfma"):
            self.kind = "mfma"; self.defs = R[0]; self.ab = R[1] + R[2]; self.srcc = R[3]; self.uses = self.ab + self.srcc
        elif op.startswith("ds_"):
            self.kind = "lds"
            if op.startswith(("ds_read", "ds_swizzle", "ds_bpermute", "ds_permute")): self.defs = R[0]; self.uses = flat(R[1:])
            else: self.uses = flat(R)
        elif op.startswith(("buffer_", "global_")):
            self.kind = "vmem"
            if op in ("buffer_wbl2", "buffer_inv"): pass
            elif "load" in op and "lds" not in mods and "_lds_" not in op: self.defs = R[0]; self.uses = flat(R[1:])
            elif "load" in op: self.uses = flat(R) + [("s", "m0")]
            elif "atomic" in op and "sc0" in mods: self.defs = R[0]; self.uses = flat(R)
            else:
                self.uses = flat(R)
                self.wide = op.endswith(("x3", "x4"))
        elif op.startswith("v_"):
            self.kind = "trans" if op.startswith(TRANS) else "valu"
            self.defs = list(R[0]); self.uses = flat(R[1:])
            if "swap" in op: self.defs = R[0] + R[1]; self.uses = R[0] + R[1]
            if op.startswith(("v_fmac", "v_writelane")) or "dpp" in op: self.uses = self.uses + R[0]
            if op.startswith(("v_add_co", "v_sub_co", "v_addc_co")): self.defs = R[0] + R[1]; self.uses = flat(R[2:])
            if op == "v_nop": self.defs = []; self.uses = []
        elif op.startswith("s_"):
            self.kind = "salu"
            if op.startswith(("s_load", "s_memtime", "s_memrealtime", "s_buffer_load")): self.kind = "smem"
            if op.startswith(("s_cmp", "s_bitcmp", "s_cbranch", "s_branch", "s_waitcnt", "s_barrier", "s_nop", "s_endpgm", "s_sleep", "s_setprio", "s_setpc")):
                self.uses = flat(R)
            else:
                self.defs = list(R[0]) if R else []; self.uses = flat(R[1:])
                if op.startswith(("s_cmov", "s_addk", "s_mulk")): self.uses = self.uses + list(R[0])
                if "saveexec" in op: self.defs += [("s", "exec")]; self.uses += [("s", "exec")]
        elif op == "NEED":
            self.kind = "none"; self.label = True
        else:
            raise ValueError("unknown op: " + text)
    def states(self):
        if self.kind == "none": return 0
        if self.op == "s_nop": return int(self.text.split()[1]) + 1
        return 1

def _wtxt(w):
    p = []
    if "vm" in w: p.append("vmcnt(%d)" % w["vm"])
    if "lgkm" in w: p.append("lgkmcnt(%d)" % w["lgkm"])
    return "s_waitcnt " + " ".join(p)

class Block:
    def __init__(self, name): self.name = name; self.ins = []
    def add(self, text, tag=None, need=None, chain=None):
        lines = [l for l in text.split("\n") if l.strip()]
        out = None
        for k, l in enumerate(lines):
            out = Ins(l, tag if k == len(lines) - 1 else None, need if k == 0 else None)
            out.chain = chain or self.name
            self.ins.append(out)
        return out
    __call__ = add
    def emit(self):
        L = []
        for i in self.ins:
            if i.wait_before: L.append(_wtxt(i.wait_before))
            n = i.nops
            while n > 0:
                k = min(n, 16); L.append("s_nop %d" % (k - 1)); n -= k
            if i.op != "NEED": L.append(i.text)
            if i.wait_after: L.append(_wtxt(i.wait_after))
        return "\n".join(L)

MAXC = {"vm": 63, "lgkm": 15}

def _apply(q, n):
    while len(q) > n: q.pop(0)

def insert_waits(path, hoist=True):
    changed = False
    q = {"vm": [], "lgkm": []}
    lastm = None
    issued = {"vm": 0, "lgkm": 0}
    for b in path:
        lastm = None
        for I in b.ins:
            for c, n in I.wait_before.items(): _apply(q[c], n)
            if I.kind != "none" or I.need:
                touched = set(I.uses) | set(I.defs)
                for c in ("vm", "lgkm"):
                    hit = None
                    for (sq, P) in q[c]:
                        dep = (P.tag is not None and P.tag in I.need) or (("all_" + c) in I.need)
                        if not dep and P.defs and touched & set(P.defs):
                            if not (set(I.uses) & set(P.defs)) and I.kind == P.kind and c == ("vm" if I.kind == "vmem" else "lgkm") and P.kind != "smem":
                                dep = False
                            else: dep = True
                        if dep: hit = (sq, P)
                    if hit:
                        sq, P = hit
                        smem = any(x[1].kind == "smem" for x in q[c])
                        if hoist and lastm is not None and lastm[1][c] > sq and not smem:
                            n = min(lastm[1][c] - sq - 1, MAXC[c]); tgt = lastm[0].wait_after
                        else:
                            n = 0 if smem else min(issued[c] - sq - 1, MAXC[c]); tgt = I.wait_before
                        if c not in tgt or tgt[c] > n: tgt[c] = n; changed = True
                        if smem: q[c].clear()
                        while q[c] and q[c][0][0] <= sq: q[c].pop(0)
            if I.op == "s_waitcnt":
                m = re.search(r"vmcnt\((\d+)\)", I.text)
                if m: _apply(q["vm"], int(m.group(1)))
                m = re.search(r"lgkmcnt\((\d+)\)", I.text)
                if m: _apply(q["lgkm"], int(m.group(1)))
            c = {"vmem": "vm", "lds": "lgkm", "smem": "lgkm"}.get(I.kind)
            if c == "vm" and len(q[c]) >= 60:
                I.wait_before["vm"] = 44; _apply(q[c], 44); changed = True
            if c:
                q[c].append((issued[c], I)); issued[c] += 1
                if c == "vm" and len(q[c]) > 63: raise RuntimeError("more than 63 vm ops outstanding at " + I.text + " in " + b.name)
            if I.kind == "mfma": lastm = (I, dict(issued))
            if I.label and I.text.endswith(":"): lastm = None
            for c, n in I.wait_after.items(): _apply(q[c], n)
    return changed

def _passes(I):
    return 8 if "32x32" in I.op else 4
_D_VALU = {4: 8, 8: 12}; _D_AB = {4: 8, 8: 12}; _D_COV = {4: 6, 8: 10}; _C_WAR = {4: 3, 8: 7}

def pad_hazards(path):
    changed = False
    hist = []
    pos = 0
    for b in path:
        for I in b.ins:
            if I.wait_before: pos += 1
            if I.kind == "none":
                if I.wait_after: pos += 1
                continue
            need = 0
            U = set(I.uses); D = set(I.defs)
            for (p, P) in hist:
                dist = pos - p - 1 + 0
                req = 0
                PD = set(P.defs)
                v = P.kind in ("valu", "trans")
                if P.kind == "mfma":
                    n = _passes(P)
                    if I.kind == "mfma":
                        if PD & set(I.ab): req = max(req, _D_AB[n])
                        if PD & set(I.srcc) and not (I.srcc == P.defs and _passes(I) == n): req = max(req, _D_COV[n])
                        if PD & D and not (PD & set(I.srcc)): req = max(req, _D_COV[n])
                    elif I.kind in ("valu", "trans"):
                        if PD & (U | D): req = max(req, _D_VALU[n])
                        if set(P.srcc) & D: req = max(req, _C_WAR[n])
                    elif I.kind in ("vmem", "lds"):
                        if PD & (U | D): req = max(req, _D_VALU[n])
                if v:
                    vd = {r for r in PD if r[0] in "va"}; sd = {r for r in PD if r[0] == "s"}
                    if I.kind == "mfma" and vd & U: req = max(req, 2)
                    if P.kind == "trans" and I.kind in ("valu", "trans", "vmem", "lds") and vd & U: req = max(req, 1)
                    if ("dpp" in I.op or "permlane" in I.op) and vd & U: req = max(req, 2)
                    if I.op.startswith(("v_readfirstlane", "v_readlane")) and vd & U: req = max(req, 1)
                    if I.kind == "vmem" and sd & U: req = max(req, 5)
                    if I.kind in ("valu", "trans") and sd & U: req = max(req, 2)
                    if I.kind in ("salu", "smem") and sd & U: req = max(req, 2)
                    if I.op.startswith("s_cbranch_vcc") and ("s", "vcc") in sd: req = max(req, 2)
                if P.kind == "salu" and ("s", "m0") in PD and ("s", "m0") in U and I.kind == "vmem": req = max(req, 1)
                if P.kind == "salu" and ("s", "exec") in PD and ("dpp" in I.op or "permlane" in I.op): req = max(req, 1)
                if P.kind == "vmem" and P.wide and {r for r in P.uses if r[0] in "va"} & D and I.kind in ("valu", "trans", "mfma"): req = max(req, 2)
                if req > dist: need = max(need, req - dist)
            if need > I.nops: I.nops = need; changed = True
            pos += I.nops
            hist.append((pos, I)); pos += I.states()
            hist[-1] = (pos - 1, I)
            if I.wait_after: pos += 1
            hist = [h for h in hist if pos - h[0] < 24]
    return changed

def finalize(paths, hoist=True):
    for _ in range(20):
        ch = False
        for p in paths: ch |= insert_waits(p, hoist)
        if not ch: break
    else: raise RuntimeError("waits did not converge")
    for _ in range(20):
        ch = False
        for p in paths: ch |= pad_hazards(p)
        if not ch: break
    else: raise RuntimeError("hazards did not converge")

def estimate(blocks, verbose=False):
    t = 0; mf_free = 0; prev = None; shadow = False; nm = 0; over = []
    for b in blocks:
        for line in b.emit().split("\n"):
            I = Ins(line)
            if I.kind == "none": continue
            if I.kind == "mfma":
                if shadow: t += 4
                if t > mf_free and nm: over.append((nm, t - mf_free))
                t = max(t, mf_free); mf_free = t + 4 * _passes(I); t += 4; shadow = True; nm += 1; prev = "mfma"; continue
            if I.kind in ("salu", "smem"):
                t += 4 * I.states(); shadow = False
                continue
            if shadow: t += 4; shadow = False
            if I.kind == "valu": t += 4
            elif I.kind == "trans": t += 8
            elif I.kind == "lds": t += 4 + (8 if prev in ("valu", "trans") else 0)
            elif I.kind == "vmem": t += 8 + (8 if prev in ("valu", "trans") else 0)
            prev = I.kind
    t = max(t, mf_free)
    if verbose: print("  mfma", nm, "cycles", t, "overfull gaps", len(over), "lost", sum(o[1] for o in over), over[:40])
    return t

class Gaps:
    def __init__(self, mf):
        self.mf = list(mf); n = len(mf); self.chain = None; self.busy = set()
        self.s = [[] for _ in range(n)]; self.m = [[] for _ in range(n)]; self.v = [[] for _ in range(n)]
    def put(self, g, text, tag=None, need=None):
        k = Ins(text.split("\n")[0]).kind
        L = self.s if k in ("salu", "smem", "none") else self.m if k in ("lds", "vmem") else self.v
        L[g].append((text, tag, need, self.chain))
    def cost(self, g):
        c = 4 * max(0, sum(x[0].count("\n") + 1 for x in self.s[g] if not x[0].startswith("NEED")) - 1)
        for x in self.m[g]: c += 4 if x[0].startswith("ds_") else 8
        for x in self.v[g]: c += 8 if x[0].startswith(TRANS) else 4
        return c
    def place(self, lo, hi, text, budget, tag=None, need=None):
        k = Ins(text.split("\n")[0]).kind
        w = {"lds": 4, "vmem": 8, "valu": 4, "trans": 8}.get(k, 0)
        best = None
        for g in range(lo, hi + 1):
            if w == 0:
                if not self.s[g] and g not in self.busy and self.cost(g) + 4 * text.count("\n") <= budget: best = g; break
            elif self.cost(g) + w <= budget: best = g; break
        if best is None: best = min(range(lo, hi + 1), key=self.cost)
        self.put(best, text, tag, need); return best
    def seq(self, L, lo, hi, budget, first_need=None, step=0):
        g = lo; pc = -1
        for k, x in enumerate(L):
            txt, tag, need = (x + (None,))[:3] if isinstance(x, tuple) else (x, None, None)
            kind = Ins(txt.split("\n")[0]).kind
            cat = 0 if kind in ("salu", "smem", "none") else 1 if kind in ("lds", "vmem") else 2
            if cat < pc: g += 1
            if k == 0 and first_need: need = (need or []) + first_need
            if g > hi: raise RuntimeError("seq overflow: " + txt)
            g = self.place(g, min(hi, g + 5), txt, budget, tag, need)
            pc = cat
            if cat == 1: g += step
            if "m0," in txt and cat == 0: pass
        return g
    def into(self, blk):
        for g, m in enumerate(self.mf):
            blk.add(m)
            self.fill(blk, g)
    def fill(self, blk, g):
        for (t, tag, need, ch) in self.s[g] + self.m[g] + self.v[g]: blk.add(t, tag, need, ch)

_SCCW = ("s_add", "s_sub", "s_cmp", "s_lshl", "s_lshr", "s_ashr", "s_and", "s_or", "s_xor", "s_bitcmp", "s_min", "s_max", "s_not", "s_bfe")
_SCCR = ("s_cselect", "s_cmov", "s_addc", "s_subb", "s_cbranch_scc")
def check_chains(path, show=True):
    last = {}; lastc = {}; cross = {}; bad = 0
    for b in path:
        for I in b.ins:
            if I.kind == "none": continue
            U = list(I.uses); Dd = list(I.defs)
            if I.op.startswith(_SCCR): U.append(("s", "scc"))
            if I.op.startswith("s_cbranch_vcc"): U.append(("s", "vcc"))
            if I.op.startswith(_SCCW): Dd.append(("s", "scc"))
            for r in U:
                w = last.get(r); wc = lastc.get((I.chain, r))
                if wc is not None and wc is not w:
                    if bad < 12: print("CHAIN CLOBBER", I.chain, r, "|", I.text, "| expected", wc.text, "| got", w.chain, w.text)
                    bad += 1
                elif wc is None and w is not None and w.chain != I.chain:
                    cross.setdefault((w.chain, I.chain), set()).add(r)
                elif w is None and r not in (("s", 0), ("s", 1), ("s", 2), ("v", 0), ("s", "exec")):
                    print("UNDEFINED", r, I.text); bad += 1
            for r in Dd: last[r] = I; lastc[(I.chain, r)] = I
    if show:
        for k, v in cross.items():
            if k[1].startswith("dma") and k[0] == "pro": continue
            v = sorted(v, key=lambda r: (r[0], str(r[1]).zfill(4)))
            print("  flow", k[0], "->", k[1], " ".join(f"{a}{b}" for a, b in v[:24]), "..." if len(v) > 24 else "")
    return bad
```

```python
from asmlib import *
import math
NAME = "adaLN_cond__compressed_kv_cla__dense_activation_squared_relu__prompt"
WS_MOD  = 0
WS_UV   = 0x4000
WS_STAT = 0x10000
WS_H    = 0x100000
WS_A2   = 0x400000
WS_X1   = 0x700000
WS_WO   = 0xD00000
WS_W1   = 0x1300000
WS_W2   = 0x1600000
WS_H1   = 0x1900000
WS_CTX  = 0x2100000
WS_KV   = 0x3200000
HS      = 66 * 16384
WS_SIZE = 0x10000000
QS = math.log2(math.e) / math.sqrt(128.0)
import struct
def fbits(x): return "0x%08x" % struct.unpack("<I", struct.pack("<f", x))[0]
P = {n: 16 + 2 * i for i, n in enumerate(["x", "ckv", "wq", "wuk", "wuv", "wo", "bx", "w1", "b1", "w2", "b2", "c", "wmod", "out", "dbg", "ws"])}
def load_ptrs(b):
    b("s_load_dwordx16 s[16:31], s[0:1], 0")
    b("s_load_dwordx16 s[32:47], s[0:1], 64")
def srd(b, d, ptr, nbytes):
    b(f"s_mov_b32 s{d}, s{P[ptr]}\ns_mov_b32 s{d+1}, s{P[ptr]+1}\ns_mov_b32 s{d+2}, {nbytes}\ns_mov_b32 s{d+3}, 0x20000")
def vr(a, n=4): return f"v[{a}:{a+n-1}]"
def ar(a, n=4): return f"a[{a}:{a+n-1}]"
def sr(a, n=4): return f"s[{a}:{a+n-1}]"
def mfma(d, a, b, c): return f"v_mfma_f32_16x16x32_bf16 {d}, {a}, {b}, {c}"
def kd(name, vgpr=512, acc=256, sgpr=102):
    return f""".p2align 6
.amdhsa_kernel {name}
  .amdhsa_next_free_vgpr {vgpr}
  .amdhsa_next_free_sgpr {sgpr}
  .amdhsa_accum_offset {acc}
  .amdhsa_group_segment_fixed_size 0
  .amdhsa_kernarg_size 128
  .amdhsa_user_sgpr_count 2
  .amdhsa_user_sgpr_kernarg_segment_ptr 1
  .amdhsa_system_sgpr_workgroup_id_x 1
  .amdhsa_float_denorm_mode_32 3
.end_amdhsa_kernel
"""
def khead(name):
    return f".globl {name}\n.p2align 8\n.type {name},@function\n{name}:\n"
def divmagic(d): return -(-(1 << 32) // d)

import os
STAMP = os.environ.get("STAMP", "0") == "1"
WS_STAMP = 0xF000000
class Stamper:
    def __init__(self, kidx, vreg, spair): self.k = kidx; self.v = vreg; self.s = spair; self.n = 0
    def lines(self):
        if not STAMP: return []
        L = []
        if getattr(self, "skip", False): self.skip = False
        elif self.n: L.append(f"v_writelane_b32 v{self.v}, s{self.s + 2 * ((self.n - 1) % 2)}, {self.n - 1}")
        L.append(f"s_memrealtime s[{self.s + 2 * (self.n % 2)}:{self.s + 2 * (self.n % 2) + 1}]")
        self.n += 1
        return L
    def at(self, b):
        for l in self.lines(): b(l)
    def fin(self, b, S_WS, sW, vt, st):
        if not STAMP: return
        b("s_waitcnt vmcnt(0)")
        self.at(b); self.at(b)
        b(f"v_writelane_b32 v{self.v}, {self.n - 1}, 62")
        b(f"s_lshl_b32 s{st}, s2, 2\ns_add_u32 s{st}, s{st}, s{sW}\ns_lshl_b32 s{st}, s{st}, 8\ns_add_u32 s{st}, s{st}, {WS_STAMP + self.k * 262144}")
        b(f"v_and_b32 v{vt}, 63, v0\nv_lshlrev_b32 v{vt}, 2, v{vt}")
        b(f"buffer_store_dword v{self.v}, v{vt}, {sr(S_WS)}, s{st} offen")

def opt(name, default):
    return type(default)(os.environ.get(name, default))
WS_MODP = 0x40000
WS_CNT  = 0x60000
WS_UVF = 0x80000
```
